```python
import torch

def _softmax(x, axis=-1):
    return torch.softmax(x, dim=axis)
def _gelu(x):
    return torch.nn.functional.gelu(x, approximate="tanh")
def _silu(x):
    return torch.nn.functional.silu(x)
def _sigmoid(x):
    return torch.sigmoid(x)
def _layernorm(x, axis=-1, eps=1e-5):
    m = x.mean(dim=axis, keepdim=True)
    v = x.var(dim=axis, keepdim=True, unbiased=False)
    return (x - m) / torch.sqrt(v + eps)
def _scatter_add(tgt, idx, src, axis=0):
    return tgt.clone().index_add_(axis, idx, src)
def _segment_sum(src, seg, n):
    out = torch.zeros((n,) + src.shape[1:], dtype=src.dtype)
    return out.index_add_(0, seg, src)
def _pad(x, pw):
    flat = tuple(v for pair in reversed(pw) for v in pair)
    return torch.nn.functional.pad(x, flat)

kernel_name = 'recurrent_scan__gqa_block_cached__mixer_channel_mlp__decode'

def setup_inputs():

    _w = (lambda a: (lambda t: t.to(torch.bfloat16) if t.is_floating_point() else t)(torch.as_tensor(a)))
    def _A_setup():
        B, Sq, D = 1, 1, 512
        Hq, Hkv, Sk, Dh = 32, 8, 32768, 128
        assert Hq % Hkv == 0, (Hq, Hkv)
        return {
            "x": _w((lambda *s: torch.randn(*s, dtype=torch.bfloat16) * 0.1)(B, Sq, D)),
            "k_cache": _w((lambda *s: torch.randn(*s, dtype=torch.bfloat16) * 0.8)(B, Hkv, Sk, Dh)),
            "v_cache": _w((lambda *s: torch.randn(*s, dtype=torch.bfloat16) * 3.2)(B, Hkv, Sk, Dh)),
            "wq": _w((lambda *s: torch.randn(*s, dtype=torch.bfloat16) * 0.8)(D, Hq * Dh) * (D ** -0.5)),
            "wo": _w((lambda *s: torch.randn(*s, dtype=torch.bfloat16) * 3.2)(Hq * Dh, D) * ((Hq * Dh) ** -0.5)),
        }
    _A_in = _A_setup()

    def _B_setup():
        B, S, D, F = 1, 1, 512, 1792
        return {
            "x": _w((lambda *s: torch.randn(*s, dtype=torch.bfloat16) * 0.1)(B, S, D)),
            "w1": _w((lambda *s: torch.randn(*s, dtype=torch.bfloat16) * 3.2)(D, F) * (D ** -0.5)),
            "b1": _w((lambda *s: torch.randn(*s, dtype=torch.bfloat16) * 3.2)(F)),
            "w2": _w((lambda *s: torch.randn(*s, dtype=torch.bfloat16) * 3.2)(F, D) * (F ** -0.5)),
            "b2": _w((lambda *s: torch.randn(*s, dtype=torch.bfloat16) * 3.2)(D)),
        }
    _B_in = _B_setup()

    return {
        "A_x": _A_in["x"],
        "A_k_cache": _A_in["k_cache"],
        "A_v_cache": _A_in["v_cache"],
        "A_wq": _A_in["wq"],
        "A_wo": _A_in["wo"],
        "B_x": _B_in["x"],
        "B_w1": _B_in["w1"],
        "B_b1": _B_in["b1"],
        "B_w2": _B_in["w2"],
        "B_b2": _B_in["b2"],
    }

def reference(A_x, A_k_cache, A_v_cache, A_wq, A_wo, B_x, B_w1, B_b1, B_w2, B_b2):
    def _A_ref(x, k_cache, v_cache, wq, wo):
        B, Sq, D = x.shape
        Hq, Dh = 32, 128
        Hkv = k_cache.shape[1]
        rep = Hq // Hkv
        q = (lambda x, *d: x.permute(*d))((x @ wq).reshape(B, Sq, Hq, Dh), 0, 2, 1, 3)
        k = (lambda x, n, axis: torch.repeat_interleave(x, n, dim=axis))(k_cache, rep, axis=1)
        v = (lambda x, n, axis: torch.repeat_interleave(x, n, dim=axis))(v_cache, rep, axis=1)
        scores = torch.einsum("bhqd,bhkd->bhqk", q, k) * (Dh ** -0.5)
        p = _softmax(scores, axis=-1)
        o = torch.einsum("bhqk,bhkd->bhqd", p, v)
        return (lambda x, *d: x.permute(*d))(o, 0, 2, 1, 3).reshape(B, Sq, Hq * Dh) @ wo

    def _B_ref(x, w1, b1, w2, b2):
        y = _layernorm(x, axis=-1)
        h = _gelu(torch.einsum("bsd,df->bsf", y, w1) + b1)
        return torch.einsum("bsf,fd->bsd", h, w2) + b2

    x = A_x
    xn = _layernorm(x, axis=-1)
    s = _A_ref(xn, A_k_cache, A_v_cache, A_wq, A_wo)
    g = _silu(_B_ref(xn, B_w1, B_b1, B_w2, B_b2))
    return x + s * g
```

```python
NAME = "recurrent_scan__gqa_block_cached__mixer_channel_mlp__decode"
out = []
def E(s): out.append("    " + s)
def L(s): out.append(s + ":")
def C(s): out.append("    ; " + s)

WS_Q = 0x0
WS_H = 0x4000
WS_PART = 0x10000
WS_ML = 0x90000
WS_P1 = 0x100000
WS_P2 = 0x180000
LOG2E = 1.4426950408889634
import struct
def fb(x): return "0x%08x" % struct.unpack("<I", struct.pack("<f", x))[0]

def srd(d, b, nbytes, off=None):
    if off is None:
        E(f"s_mov_b32 s{d}, s{b}"); E(f"s_mov_b32 s{d+1}, s{b+1}")
    else:
        E(f"s_add_u32 s{d}, s{b}, {off}"); E(f"s_addc_u32 s{d+1}, s{b+1}, 0")
    E(f"s_mov_b32 s{d+2}, {nbytes}"); E(f"s_mov_b32 s{d+3}, 0x00020000")

def wave_sum(v, tmp, addr):
    for m in (1, 2, 4, 8, 16, 32):
        E(f"v_xor_b32 v{tmp+1}, {m*4}, v{addr}")
        E(f"ds_bpermute_b32 v{tmp}, v{tmp+1}, v{v}")
        E("s_waitcnt lgkmcnt(0)")
        E(f"v_add_f32 v{v}, v{v}, v{tmp}")

def header(k):
    out.append(f".globl {k}"); out.append(".p2align 8"); out.append(f".type {k},@function"); L(k)

def unpack8(src, dst):
    for j in range(4):
        E(f"v_lshlrev_b32 v{dst+2*j}, 16, v{src+j}")
        E(f"v_and_b32 v{dst+2*j+1}, 0xffff0000, v{src+j}")

def round_bf16(v, t):
    E(f"v_bfe_u32 v{t}, v{v}, 16, 1")
    E(f"v_add3_u32 v{v}, v{v}, v{t}, s40")
    E(f"v_and_b32 v{v}, 0xffff0000, v{v}")

def k1():
    header("prep_kernel")
    E("s_cmp_ge_u32 s2, 184"); E("s_cbranch_scc1 K1_END")
    E("s_load_dwordx2 s[4:5], s[0:1], 0")
    E("s_load_dwordx2 s[6:7], s[0:1], 24")
    E("s_load_dwordx2 s[8:9], s[0:1], 48")
    E("s_load_dwordx2 s[10:11], s[0:1], 56")
    E("s_load_dwordx2 s[12:13], s[0:1], 96")
    E("s_mov_b32 s40, 0x7fff")
    E("s_waitcnt lgkmcnt(0)")
    srd(16, 4, 1024)
    E("s_cmp_lt_u32 s2, 128"); E("s_cbranch_scc0 K1_H")
    srd(20, 6, 512*4096*2); E("s_mov_b32 s24, 8192"); E("s_lshl_b32 s25, s2, 6")
    E("s_branch K1_J")
    L("K1_H")
    srd(20, 8, 512*1792*2); E("s_mov_b32 s24, 3584"); E("s_sub_u32 s25, s2, 128"); E("s_lshl_b32 s25, s25, 6")
    L("K1_J")
    E("v_and_b32 v1, 3, v0"); E("v_lshrrev_b32 v2, 2, v0")
    E("v_lshlrev_b32 v3, 3, v2"); E("v_mul_lo_u32 v3, v3, s24")
    E("v_lshl_add_u32 v3, v1, 4, v3"); E("v_add_u32 v3, s25, v3")
    for r in range(8):
        E(f"buffer_load_dwordx4 v[{16+4*r}:{19+4*r}], v3, s[20:23], 0 offen")
        if r < 7: E("v_add_u32 v3, s24, v3")
    E("v_and_b32 v4, 63, v0"); E("v_lshlrev_b32 v5, 4, v4")
    E("buffer_load_dwordx4 v[8:11], v5, s[16:19], 0 offen")
    E("v_lshlrev_b32 v6, 4, v2")
    E("buffer_load_dwordx4 v[12:15], v6, s[16:19], 0 offen")
    E("v_lshlrev_b32 v5, 2, v4")
    E("s_waitcnt vmcnt(1)")
    unpack8(8, 48)
    def stats(rm, rs):
        E("v_add_f32 v7, v48, v49")
        for j in range(2, 8): E(f"v_add_f32 v7, v7, v{48+j}")
        wave_sum(7, 56, 5)
        E(f"v_mul_f32 v{rm}, {fb(1/512)}, v7")
        E(f"v_sub_f32 v58, v48, v{rm}"); E("v_mul_f32 v7, v58, v58")
        for j in range(1, 8):
            E(f"v_sub_f32 v58, v{48+j}, v{rm}"); E("v_fmac_f32 v7, v58, v58")
        wave_sum(7, 56, 5)
        E(f"v_mov_b32 v58, {fb(1e-5)}")
        E(f"v_fmac_f32 v58, {fb(1/512)}, v7")
        E(f"v_rsq_f32 v{rs}, v58")
    stats(60, 61)
    E("s_nop 0")
    for j in range(8):
        E(f"v_sub_f32 v{48+j}, v{48+j}, v60"); E(f"v_mul_f32 v{48+j}, v{48+j}, v61"); round_bf16(48+j, 58)
    E("s_waitcnt vmcnt(0)")
    unpack8(12, 64)
    for j in range(8):
        E(f"v_sub_f32 v{64+j}, v{64+j}, v60"); E(f"v_mul_f32 v{64+j}, v{64+j}, v61"); round_bf16(64+j, 58)
    E("s_cmp_lt_u32 s2, 128"); E("s_cbranch_scc1 K1_NOLN2")
    stats(62, 63)
    E("s_nop 0")
    for j in range(8):
        E(f"v_sub_f32 v{64+j}, v{64+j}, v62"); E(f"v_mul_f32 v{64+j}, v{64+j}, v63"); round_bf16(64+j, 58)
    L("K1_NOLN2")
    for c in range(8): E(f"v_mov_b32 v{72+c}, 0")
    for r in range(8):
        unpack8(16+4*r, 80)
        for c in range(8): E(f"v_fmac_f32 v{72+c}, v{64+r}, v{80+c}")
    E("v_lshlrev_b32 v6, 7, v2"); E("v_lshl_add_u32 v6, v1, 5, v6")
    E("ds_write_b128 v6, v[72:75]"); E("ds_write_b128 v6, v[76:79] offset:16")
    E("s_waitcnt lgkmcnt(0)"); E("s_barrier")
    E("v_and_b32 v1, 31, v0"); E("v_lshrrev_b32 v2, 5, v0")
    E("v_lshlrev_b32 v6, 10, v2"); E("v_lshl_add_u32 v6, v1, 2, v6")
    for i in range(8): E(f"ds_read_b32 v{16+i}, v6 offset:{i*128}")
    E("s_waitcnt lgkmcnt(0)")
    for i in range(1, 8): E(f"v_add_f32 v16, v16, v{16+i}")
    E("v_lshlrev_b32 v6, 2, v0")
    E("ds_write_b32 v6, v16 offset:8192")
    E("s_waitcnt lgkmcnt(0)"); E("s_barrier")
    E("v_cmp_gt_u32 vcc, 32, v0"); E("s_and_saveexec_b64 s[30:31], vcc"); E("s_cbranch_execz K1_END")
    for i in range(8): E(f"ds_read_b32 v{16+i}, v6 offset:{8192+i*128}")
    E("s_waitcnt lgkmcnt(0)")
    for i in range(1, 8): E(f"v_add_f32 v16, v16, v{16+i}")
    E("s_cmp_lt_u32 s2, 128"); E("s_cbranch_scc0 K1_HOUT")
    srd(32, 12, 8192, WS_Q)
    round_bf16(16, 17); E("v_lshrrev_b32 v16, 16, v16")
    E("v_lshlrev_b32 v6, 1, v0"); E("s_lshl_b32 s26, s2, 6"); E("v_add_u32 v6, s26, v6")
    E("buffer_store_short v16, v6, s[32:35], 0 offen")
    E("s_branch K1_END")
    L("K1_HOUT")
    srd(32, 10, 3584)
    E("v_lshlrev_b32 v6, 1, v0"); E("v_add_u32 v6, s25, v6")
    E("buffer_load_ushort v17, v6, s[32:35], 0 offen")
    srd(36, 12, 1792*4, WS_H)
    E("s_waitcnt vmcnt(0)")
    E("v_lshlrev_b32 v17, 16, v17"); E("v_add_f32 v16, v16, v17")
    E("v_mul_f32 v17, v16, v16"); E("v_mul_f32 v17, v17, v16")
    E(f"v_mov_b32 v18, {fb(0.044715)}"); E("v_fma_f32 v17, v17, v18, v16")
    E(f"v_mul_f32 v17, {fb(2*0.7978845608028654*LOG2E)}, v17")
    E("v_exp_f32 v17, v17"); E("s_nop 0"); E("v_add_f32 v17, 1.0, v17"); E("v_rcp_f32 v17, v17"); E("s_nop 0")
    E("v_fma_f32 v17, v17, -2.0, 1.0")
    E("v_add_f32 v17, 1.0, v17"); E("v_mul_f32 v16, v16, v17"); E("v_mul_f32 v16, 0.5, v16")
    E("v_lshlrev_b32 v6, 1, v6")
    E("buffer_store_dword v16, v6, s[36:39], 0 offen")
    L("K1_END")
    E("s_endpgm")

def k2():
    header("attn_kernel")
    E("s_cmp_ge_u32 s2, 256"); E("s_cbranch_scc1 K2_END")
    E("s_load_dwordx2 s[4:5], s[0:1], 8"); E("s_load_dwordx2 s[6:7], s[0:1], 16"); E("s_load_dwordx2 s[8:9], s[0:1], 96")
    E("v_lshrrev_b32 v1, 6, v0"); E("s_nop 0"); E("v_readfirstlane_b32 s3, v1")
    E("s_lshr_b32 s10, s2, 5"); E("s_and_b32 s11, s2, 31")
    E("s_lshl_b32 s12, s10, 23")
    E("s_lshl_b32 s13, s11, 18"); E("s_lshl_b32 s14, s3, 15"); E("s_add_u32 s13, s13, s14")
    E("s_waitcnt lgkmcnt(0)")
    srd(16, 4, 1<<23, "s12"); srd(20, 6, 1<<23, "s12"); srd(24, 8, 8192, WS_Q)
    E("v_and_b32 v2, 63, v0"); E("v_lshrrev_b32 v3, 4, v2"); E("v_and_b32 v4, 15, v2")
    E("s_lshl_b32 s15, s10, 10")
    E("v_lshlrev_b32 v5, 8, v4"); E("v_lshl_add_u32 v5, v3, 4, v5"); E("v_add_u32 v5, s15, v5")
    E("v_mov_b32 v6, 0x10000000"); E("v_cmp_gt_u32 vcc, 4, v4"); E("s_nop 1"); E("v_cndmask_b32 v5, v6, v5, vcc")
    for d in range(4): E(f"buffer_load_dwordx4 v[{16+4*d}:{19+4*d}], v5, s[24:27], 0 offen offset:{64*d}")
    E("v_lshlrev_b32 v5, 8, v4"); E("v_lshl_add_u32 v5, v3, 4, v5"); E("v_add_u32 v5, s13, v5")
    for bt in range(8):
        for d in range(4):
            r = 64 + bt*16 + d*4
            E(f"buffer_load_dwordx4 v[{r}:{r+3}], v5, s[16:19], 0 offen offset:{64*d} nt")
        if bt < 7: E("v_add_u32 v5, 0x1000, v5")
    E("v_lshlrev_b32 v6, 1, v3"); E("v_xor_b32 v7, v4, v6"); E("v_xor_b32 v8, 8, v7")
    E("v_lshlrev_b32 v9, 8, v3"); E("v_add_u32 v9, s13, v9")
    E("v_lshl_add_u32 v7, v7, 4, v9"); E("v_lshl_add_u32 v8, v8, 4, v9")
    E("s_lshl_b32 s28, s3, 14")
    def vdma(b):
        for half in range(2):
            E(f"s_add_u32 s29, s28, {(b&1)*8192 + half*4096}"); E("s_mov_b32 m0, s29")
            E(f"s_mov_b32 s30, {b*8192 + half*4096}")
            for i in range(4):
                E(f"buffer_load_dwordx4 v{7+(i&1)}, s[20:23], s30 offen offset:{1024*i} nt lds")
    vdma(0); vdma(1)
    E("v_lshrrev_b32 v10, 2, v4"); E("v_lshl_add_u32 v10, v3, 2, v10")
    E("v_and_b32 v11, 7, v10"); E("v_lshlrev_b32 v11, 1, v11")
    E("v_bfe_u32 v12, v4, 1, 1"); E("v_and_b32 v13, 1, v4")
    E("v_lshlrev_b32 v14, 8, v10"); E("v_lshl_add_u32 v14, v13, 3, v14"); E("v_add_u32 v14, s28, v14")
    for nb in range(8):
        E(f"v_add_u32 v15, {2*nb}, v12"); E("v_xor_b32 v15, v15, v11"); E(f"v_lshl_add_u32 v{200+nb}, v15, 4, v14")
    for i in range(32): E(f"v_mov_b32 v{224+i}, 0")
    for bt in range(8):
        E(f"s_waitcnt vmcnt({16 + 4*(7-bt)})")
        for d in range(4):
            r = 64 + bt*16 + d*4
            c = "0" if d == 0 else f"v[{32+4*bt}:{35+4*bt}]"
            E(f"v_mfma_f32_16x16x32_bf16 v[{32+4*bt}:{35+4*bt}], v[{r}:{r+3}], v[{16+4*d}:{19+4*d}], {c}")
    E("s_nop 7"); E("s_nop 1")
    E("v_max_f32 v5, v32, v33")
    for i in range(2, 32): E(f"v_max_f32 v5, v5, v{32+i}")
    E("v_lshlrev_b32 v6, 2, v2")
    for m in (16, 32):
        E(f"v_xor_b32 v9, {m*4}, v6"); E("ds_bpermute_b32 v10, v9, v5"); E("s_waitcnt lgkmcnt(0)"); E("v_max_f32 v5, v5, v10")
    E("v_lshlrev_b32 v9, 2, v4"); E("s_lshl_b32 s31, s3, 6"); E("v_add_u32 v9, s31, v9")
    E("ds_write_b32 v9, v5 offset:0x20000 - 0x10000")
    out[-1] = "    v_add_u32 v10, 0x20000, v9"
    E("ds_write_b32 v10, v5")
    E("s_waitcnt lgkmcnt(0)"); E("s_barrier")
    E("v_lshlrev_b32 v9, 2, v4"); E("v_add_u32 v9, 0x20000, v9")
    for w in range(8): E(f"ds_read_b32 v{10+w}, v9 offset:{64*w}")
    E("s_waitcnt lgkmcnt(0)")
    E("v_max_f32 v5, v10, v11")
    for w in range(2, 8): E(f"v_max_f32 v5, v5, v{10+w}")
    c = LOG2E / (128 ** 0.5)
    E(f"s_mov_b32 s32, {fb(c)}")
    E("v_mul_f32 v6, s32, v5"); E("v_sub_f32 v6, 0, v6")
    E("v_mov_b32 v1, 0")
    for i in range(32):
        E(f"v_fma_f32 v{32+i}, v{32+i}, s32, v6")
    for i in range(32):
        E(f"v_exp_f32 v{32+i}, v{32+i}")
    E("s_nop 0")
    for i in range(32): E(f"v_add_f32 v1, v1, v{32+i}")
    for i in range(16): E(f"v_cvt_pk_bf16_f32 v{16+i}, v{32+2*i}, v{33+2*i}")
    for b in range(4):
        if b < 2: E(f"s_waitcnt vmcnt({8 if b == 0 else 0})")
        else: E(f"s_waitcnt vmcnt({8 if b == 2 else 0})")
        so = (b & 1) * 8192
        for nb in range(8):
            r = 64 + 4*nb
            E(f"ds_read_b64_tr_b16 v[{r}:{r+1}], v{200+nb} offset:{so}")
            E(f"ds_read_b64_tr_b16 v[{r+2}:{r+3}], v{200+nb} offset:{so+4096}")
        E("s_waitcnt lgkmcnt(0)")
        if b < 2: vdma(b + 2)
        for nb in range(8):
            r = 64 + 4*nb
            E(f"v_mfma_f32_16x16x32_bf16 v[{224+4*nb}:{227+4*nb}], v[{16+4*b}:{19+4*b}], v[{r}:{r+3}], v[{224+4*nb}:{227+4*nb}]")
    E("s_nop 7"); E("s_nop 1")
    E("s_barrier")
    E("s_lshl_b32 s31, s3, 8"); E("v_lshlrev_b32 v9, 2, v2"); E("v_add_u32 v9, s31, v9"); E("v_add_u32 v9, 0x20400, v9")
    E("ds_write_b32 v9, v1")
    E("s_lshl_b32 s31, s3, 11"); E("v_lshlrev_b32 v9, 2, v4"); E("v_add_u32 v9, s31, v9")
    E("v_cmp_gt_u32 vcc, 16, v2"); E("s_and_saveexec_b64 s[34:35], vcc")
    for nb in range(8):
        for i in range(4): E(f"ds_write_b32 v9, v{224+4*nb+i} offset:{i*512+nb*64}")
    E("s_mov_b64 exec, s[34:35]")
    E("s_waitcnt lgkmcnt(0)"); E("s_barrier")
    E("v_lshlrev_b32 v9, 2, v0")
    for w in range(8): E(f"ds_read_b32 v{10+w}, v9 offset:{2048*w}")
    srd(24, 8, 0x80000, WS_PART); srd(36, 8, 0x2000, WS_ML)
    E("s_waitcnt lgkmcnt(0)")
    for w in range(1, 8): E(f"v_add_f32 v10, v10, v{10+w}")
    E("s_lshl_b32 s31, s2, 11"); E("v_add_u32 v9, s31, v9")
    E("buffer_store_dword v10, v9, s[24:27], 0 offen")
    E("v_cmp_gt_u32 vcc, 4, v0"); E("s_and_saveexec_b64 s[34:35], vcc"); E("s_cbranch_execz K2_END")
    E("v_lshlrev_b32 v9, 2, v0"); E("v_add_u32 v9, 0x20400, v9")
    for j in range(32): E(f"ds_read_b32 v{32+j}, v9 offset:{64*j}")
    E("s_waitcnt lgkmcnt(0)")
    for j in range(1, 32): E(f"v_add_f32 v32, v32, v{32+j}")
    E("v_mul_f32 v33, s32, v5")
    E("v_mov_b32 v34, v32"); E("v_mov_b32 v32, v33"); E("v_mov_b32 v33, v34")
    E("s_lshl_b32 s31, s2, 5"); E("v_lshlrev_b32 v9, 3, v0"); E("v_add_u32 v9, s31, v9")
    E("buffer_store_dwordx2 v[32:33], v9, s[36:39], 0 offen")
    L("K2_END")
    E("s_endpgm")

def k3():
    header("comb_kernel")
    E("s_cmp_ge_u32 s2, 256"); E("s_cbranch_scc1 K3_END")
    E("s_load_dwordx2 s[4:5], s[0:1], 32"); E("s_load_dwordx2 s[6:7], s[0:1], 64"); E("s_load_dwordx2 s[8:9], s[0:1], 96")
    E("s_waitcnt lgkmcnt(0)")
    srd(12, 4, 4096*512*2); srd(16, 6, 1792*512*2); srd(20, 8, 0x200000)
    E("s_lshl_b32 s24, s2, 14"); E("v_lshlrev_b32 v1, 2, v0"); E("v_add_u32 v2, s24, v1")
    for i in range(16): E(f"buffer_load_dword v{16+i}, v2, s[12:15], 0 offen offset:{1024*i}" if i < 4 else f"buffer_load_dword v{16+i}, v3, s[12:15], 0 offen offset:{1024*(i&3)}") if False else None
    for q in range(4):
        E(f"v_add_u32 v3, {4096*q}, v2")
        for i in range(4): E(f"buffer_load_dword v{16+4*q+i}, v3, s[12:15], 0 offen offset:{1024*i}")
    E("s_mul_i32 s25, s2, 7168"); E("v_add_u32 v2, s25, v1")
    for q in range(2):
        E(f"v_add_u32 v3, {4096*q}, v2")
        for i in range(4 if q == 0 else 3): E(f"buffer_load_dword v{32+4*q+i}, v3, s[16:19], 0 offen offset:{1024*i}")
    E("s_lshr_b32 s26, s2, 3"); E("s_lshr_b32 s27, s26, 2"); E("s_and_b32 s28, s26, 3")
    E("s_lshl_b32 s29, s27, 10"); E("s_lshl_b32 s30, s28, 3"); E("s_add_u32 s29, s29, s30"); E(f"s_add_u32 s29, s29, {WS_ML}")
    E("v_mov_b32 v4, s29")
    for s in range(32): E(f"buffer_load_dwordx2 v[{64+2*s}:{65+2*s}], v4, s[20:23], 0 offen offset:{32*s}")
    E("v_lshrrev_b32 v5, 3, v0"); E("v_and_b32 v6, 7, v0")
    E("s_lshl_b32 s30, s27, 16"); E("s_lshl_b32 s31, s28, 9"); E("s_add_u32 s30, s30, s31")
    E("s_and_b32 s31, s2, 7"); E("s_lshl_b32 s31, s31, 6"); E("s_add_u32 s30, s30, s31"); E(f"s_add_u32 s30, s30, {WS_PART}")
    E("v_lshlrev_b32 v7, 11, v5"); E("v_lshl_add_u32 v7, v6, 3, v7"); E("v_add_u32 v7, s30, v7")
    E("buffer_load_dwordx2 v[8:9], v7, s[20:23], 0 offen")
    E("s_mul_i32 s30, s2, 28"); E(f"s_add_u32 s30, s30, {WS_H}"); E("v_mov_b32 v7, s30")
    for i in range(7): E(f"buffer_load_dword v{40+i}, v7, s[20:23], 0 offen offset:{4*i}")
    E("s_waitcnt vmcnt(8)")
    E("v_max_f32 v10, v64, v66")
    for s in range(2, 32): E(f"v_max_f32 v10, v10, v{64+2*s}")
    E("v_mov_b32 v11, 0")
    for s in range(32):
        E(f"v_sub_f32 v{64+2*s}, v{64+2*s}, v10"); E(f"v_exp_f32 v{64+2*s}, v{64+2*s}")
    E("s_nop 0")
    for s in range(32): E(f"v_fmac_f32 v11, v{64+2*s}, v{65+2*s}")
    E("v_rcp_f32 v11, v11")
    E("v_lshlrev_b32 v12, 2, v5")
    E("v_cmp_eq_u32 vcc, 0, v0"); E("s_and_saveexec_b64 s[34:35], vcc")
    E("v_mov_b32 v13, 0")
    for s in range(32): E(f"ds_write_b32 v13, v{64+2*s} offset:{4*s}")
    E("s_mov_b64 exec, s[34:35]")
    E("s_waitcnt lgkmcnt(0)"); E("s_barrier")
    E("ds_read_b32 v13, v12")
    E("s_waitcnt vmcnt(7) lgkmcnt(0)")
    E("v_mul_f32 v13, v13, v11"); E("v_mul_f32 v8, v8, v13"); E("v_mul_f32 v9, v9, v13")
    E("v_lshlrev_b32 v12, 3, v0")
    E("ds_write_b64 v12, v[8:9] offset:256")
    E("s_waitcnt lgkmcnt(0)"); E("s_barrier")
    E("v_and_b32 v12, 15, v0"); E("v_lshlrev_b32 v12, 2, v12")
    for s in range(32): E(f"ds_read_b32 v{64+s}, v12 offset:{256+64*s}")
    E("s_waitcnt lgkmcnt(0)")
    for s in range(1, 32): E(f"v_add_f32 v64, v64, v{64+s}")
    E("s_barrier")
    E("ds_write_b32 v12, v64 offset:4096")
    E("s_waitcnt lgkmcnt(0)"); E("s_barrier")
    E("v_mov_b32 v12, 0")
    for q in range(4): E(f"ds_read_b128 v[{64+4*q}:{67+4*q}], v12 offset:{4096+16*q}")
    E("s_waitcnt vmcnt(0) lgkmcnt(0)")
    E("v_mov_b32 v8, 0"); E("v_mov_b32 v9, 0"); E("v_mov_b32 v10, 0"); E("v_mov_b32 v11, 0")
    for i in range(16):
        E(f"v_lshlrev_b32 v12, 16, v{16+i}"); E(f"v_and_b32 v13, 0xffff0000, v{16+i}")
        E(f"v_fmac_f32 v8, v{64+i}, v12"); E(f"v_fmac_f32 v9, v{64+i}, v13")
    for i in range(7):
        E(f"v_lshlrev_b32 v12, 16, v{32+i}"); E(f"v_and_b32 v13, 0xffff0000, v{32+i}")
        E(f"v_fmac_f32 v10, v{40+i}, v12"); E(f"v_fmac_f32 v11, v{40+i}, v13")
    E("s_lshl_b32 s30, s2, 11"); E("v_lshlrev_b32 v12, 3, v0"); E("v_add_u32 v12, s30, v12")
    E(f"v_add_u32 v13, {WS_P1}, v12"); E("buffer_store_dwordx2 v[8:9], v13, s[20:23], 0 offen")
    E(f"v_add_u32 v13, {WS_P2}, v12"); E("buffer_store_dwordx2 v[10:11], v13, s[20:23], 0 offen")
    L("K3_END")
    E("s_endpgm")

def k4():
    header("final_kernel")
    E("s_cmp_ge_u32 s2, 8"); E("s_cbranch_scc1 K4_END")
    E("s_load_dwordx2 s[4:5], s[0:1], 0"); E("s_load_dwordx2 s[6:7], s[0:1], 72"); E("s_load_dwordx2 s[8:9], s[0:1], 96"); E("s_load_dwordx2 s[10:11], s[0:1], 80")
    E("s_mov_b32 s40, 0x7fff")
    E("s_waitcnt lgkmcnt(0)")
    srd(12, 4, 1024); srd(16, 6, 1024); srd(20, 8, 0x200000); srd(24, 10, 1024)
    E("v_and_b32 v1, 63, v0"); E("v_lshrrev_b32 v2, 6, v0")
    E("s_lshl_b32 s28, s2, 8"); E("v_lshlrev_b32 v3, 2, v1"); E("v_add_u32 v3, s28, v3")
    E("v_lshlrev_b32 v4, 17, v2"); E("v_add_u32 v3, v3, v4")
    for arr, ws in ((0, WS_P1), (1, WS_P2)):
        E(f"v_add_u32 v4, {ws}, v3")
        for half in range(32):
            E(f"buffer_load_dword v{16+64*arr+2*half}, v4, s[20:23], 0 offen")
            E(f"buffer_load_dword v{17+64*arr+2*half}, v4, s[20:23], 0 offen offset:2048")
            if half < 31: E("v_add_u32 v4, 0x1000, v4")
    E("s_waitcnt vmcnt(0)")
    for arr in range(2):
        for i in range(1, 64): E(f"v_add_f32 v{16+64*arr}, v{16+64*arr}, v{16+64*arr+i}")
    E("v_lshlrev_b32 v4, 2, v0")
    E("ds_write_b32 v4, v16"); E("ds_write_b32 v4, v80 offset:1024")
    E("s_waitcnt lgkmcnt(0)"); E("s_barrier")
    E("v_cmp_gt_u32 vcc, 64, v0"); E("s_and_saveexec_b64 s[30:31], vcc"); E("s_cbranch_execz K4_END")
    for i in range(4):
        E(f"ds_read_b32 v{16+i}, v4 offset:{256*i}"); E(f"ds_read_b32 v{20+i}, v4 offset:{1024+256*i}")
    E("s_lshl_b32 s28, s2, 7"); E("v_lshlrev_b32 v5, 1, v0"); E("v_add_u32 v5, s28, v5")
    E("buffer_load_ushort v24, v5, s[12:15], 0 offen"); E("buffer_load_ushort v25, v5, s[16:19], 0 offen")
    E("s_waitcnt vmcnt(0) lgkmcnt(0)")
    for i in range(1, 4):
        E(f"v_add_f32 v16, v16, v{16+i}"); E(f"v_add_f32 v20, v20, v{20+i}")
    E("v_lshlrev_b32 v24, 16, v24"); E("v_lshlrev_b32 v25, 16, v25")
    E("v_add_f32 v20, v20, v25")
    E(f"v_mul_f32 v21, {fb(-LOG2E)}, v20"); E("v_exp_f32 v21, v21"); E("s_nop 0"); E("v_add_f32 v21, 1.0, v21"); E("v_rcp_f32 v21, v21"); E("s_nop 0")
    E("v_mul_f32 v20, v20, v21")
    E("v_fma_f32 v16, v16, v20, v24")
    round_bf16(16, 17); E("v_lshrrev_b32 v16, 16, v16")
    E("buffer_store_short v16, v5, s[24:27], 0 offen")
    L("K4_END")
    E("s_endpgm")

def desc(k, vg, sg=102):
    out.append(f".amdhsa_kernel {k}")
    out.append(f"  .amdhsa_next_free_vgpr {vg}"); out.append(f"  .amdhsa_next_free_sgpr {sg}")
    out.append(f"  .amdhsa_accum_offset {(vg+3)//4*4}")
    out.append("  .amdhsa_group_segment_fixed_size 0"); out.append("  .amdhsa_kernarg_size 104")
    out.append("  .amdhsa_user_sgpr_count 2"); out.append("  .amdhsa_user_sgpr_kernarg_segment_ptr 1")
    out.append("  .amdhsa_system_sgpr_workgroup_id_x 1"); out.append(".end_amdhsa_kernel")

hdr = open("cdna_kernels/%s.s.ref" % NAME).read().split("; @launch")[0]
out.append(hdr.rstrip("\n"))
out.append("; @launch kernel=prep_kernel grid=(184,1,1) block=(256,1,1) lds=9216")
out.append("; @launch kernel=attn_kernel grid=(256,1,1) block=(512,1,1) lds=135168")
out.append("; @launch kernel=comb_kernel grid=(256,1,1) block=(256,1,1) lds=8192")
out.append("; @launch kernel=final_kernel grid=(8,1,1) block=(256,1,1) lds=2048")
out.append('.amdgcn_target "amdgcn-amd-amdhsa--gfx950"'); out.append(".text")
k1(); k2(); k3(); k4()
out.append('.section .rodata,"a"'); out.append(".p2align 6")
desc("prep_kernel", 96); desc("attn_kernel", 256); desc("comb_kernel", 128); desc("final_kernel", 144)
open("cdna_kernels/%s.s" % NAME, "w").write("\n".join(out) + "\n")
```

```python
NAME = "recurrent_scan__gqa_block_cached__mixer_channel_mlp__decode"
out = []
def E(s): out.append("    " + s)
def L(s): out.append(s + ":")
def C(s): out.append("    ; " + s)

WS_Q = 0x0
WS_H = 0x4000
WS_PART = 0x10000
WS_ML = 0x90000
WS_P1 = 0x100000
WS_P2 = 0x180000
LOG2E = 1.4426950408889634
import struct
def fb(x): return "0x%08x" % struct.unpack("<I", struct.pack("<f", x))[0]

def srd(d, b, nbytes, off=None):
    if off is None:
        E(f"s_mov_b32 s{d}, s{b}"); E(f"s_mov_b32 s{d+1}, s{b+1}")
    else:
        E(f"s_add_u32 s{d}, s{b}, {off}"); E(f"s_addc_u32 s{d+1}, s{b+1}, 0")
    E(f"s_mov_b32 s{d+2}, {nbytes}"); E(f"s_mov_b32 s{d+3}, 0x00020000")

def wave_sum(v, tmp, addr):
    for m in (1, 2, 4, 8, 16, 32):
        E(f"v_xor_b32 v{tmp+1}, {m*4}, v{addr}")
        E(f"ds_bpermute_b32 v{tmp}, v{tmp+1}, v{v}")
        E("s_waitcnt lgkmcnt(0)")
        E(f"v_add_f32 v{v}, v{v}, v{tmp}")

def header(k):
    out.append(f".globl {k}"); out.append(".p2align 8"); out.append(f".type {k},@function"); L(k)

def unpack8(src, dst):
    for j in range(4):
        E(f"v_lshlrev_b32 v{dst+2*j}, 16, v{src+j}")
        E(f"v_and_b32 v{dst+2*j+1}, 0xffff0000, v{src+j}")

def round_bf16(v, t):
    E(f"v_bfe_u32 v{t}, v{v}, 16, 1")
    E(f"v_add3_u32 v{v}, v{v}, v{t}, s40")
    E(f"v_and_b32 v{v}, 0xffff0000, v{v}")

def signal(slot):
    E("s_waitcnt vmcnt(0)"); E("s_barrier")
    E("v_cmp_eq_u32 vcc, 0, v0"); E("s_and_saveexec_b64 s[70:71], vcc"); E(f"s_cbranch_execz SG{slot}")
    E("v_mov_b32 v192, 1"); E("v_mov_b32 v193, 0")
    E(f"buffer_atomic_add v192, v193, s[64:67], 0 offen offset:{64*slot}")
    L(f"SG{slot}")
    E("s_mov_b64 exec, s[70:71]")
def wait_for(slot, n):
    E("v_lshrrev_b32 v192, 6, v0"); E("s_nop 0"); E("v_readfirstlane_b32 s72, v192")
    E("s_cmp_lg_u32 s72, 0"); E(f"s_cbranch_scc1 WD{slot}")
    E("v_mov_b32 v193, 0")
    L(f"WL{slot}")
    E(f"buffer_load_dword v192, v193, s[64:67], 0 offen offset:{64*slot} sc1")
    E("s_waitcnt vmcnt(0)"); E("v_readfirstlane_b32 s72, v192")
    E(f"s_cmp_ge_u32 s72, {n}"); E(f"s_cbranch_scc1 WD{slot}")
    E("s_sleep 2"); E(f"s_branch WL{slot}")
    L(f"WD{slot}")
    E("s_barrier")
PB = 0x21000
def k1():
    header(NAME + "_kernel")
    E("s_cmp_ge_u32 s2, 256"); E("s_cbranch_scc1 K4_END")
    E("s_load_dwordx2 s[68:69], s[0:1], 88"); E("s_waitcnt lgkmcnt(0)"); srd(64, 68, 256)
    E("v_mov_b32 v199, v0")
    E("s_cmp_ge_u32 s2, 184"); E("s_cbranch_scc0 K1_GO")
    k2_setup(); vdma(0); vdma(1)
    E("s_branch K1_END")
    L("K1_GO")
    E("v_and_b32 v0, 255, v0")
    E("s_load_dwordx2 s[4:5], s[0:1], 0")
    E("s_load_dwordx2 s[6:7], s[0:1], 24")
    E("s_load_dwordx2 s[8:9], s[0:1], 48")
    E("s_load_dwordx2 s[10:11], s[0:1], 56")
    E("s_load_dwordx2 s[12:13], s[0:1], 96")
    E("s_mov_b32 s40, 0x7fff")
    E("s_waitcnt lgkmcnt(0)")
    srd(16, 4, 1024)
    E("s_cmp_lt_u32 s2, 128"); E("s_cbranch_scc0 K1_H")
    srd(20, 6, 512*4096*2); E("s_mov_b32 s24, 8192"); E("s_lshl_b32 s25, s2, 6")
    E("s_branch K1_J")
    L("K1_H")
    srd(20, 8, 512*1792*2); E("s_mov_b32 s24, 3584"); E("s_sub_u32 s25, s2, 128"); E("s_lshl_b32 s25, s25, 6")
    L("K1_J")
    E("v_and_b32 v1, 3, v0"); E("v_lshrrev_b32 v2, 2, v0")
    E("v_lshlrev_b32 v3, 3, v2"); E("v_mul_lo_u32 v3, v3, s24")
    E("v_lshl_add_u32 v3, v1, 4, v3"); E("v_add_u32 v3, s25, v3")
    for r in range(8):
        E(f"buffer_load_dwordx4 v[{16+4*r}:{19+4*r}], v3, s[20:23], 0 offen")
        if r < 7: E("v_add_u32 v3, s24, v3")
    E("v_and_b32 v4, 63, v0"); E("v_lshlrev_b32 v5, 4, v4")
    E("buffer_load_dwordx4 v[8:11], v5, s[16:19], 0 offen")
    E("v_lshlrev_b32 v6, 4, v2")
    E("buffer_load_dwordx4 v[12:15], v6, s[16:19], 0 offen")
    E("v_mov_b32 v0, v199"); k2_setup(); vdma(0); vdma(1); E("v_and_b32 v0, 255, v0")
    E("v_and_b32 v1, 3, v0"); E("v_lshrrev_b32 v2, 2, v0"); E("v_and_b32 v4, 63, v0")
    E("v_lshlrev_b32 v5, 2, v4")
    E("s_waitcnt vmcnt(17)")
    unpack8(8, 48)
    def stats(rm, rs):
        E("v_add_f32 v7, v48, v49")
        for j in range(2, 8): E(f"v_add_f32 v7, v7, v{48+j}")
        wave_sum(7, 56, 5)
        E(f"v_mul_f32 v{rm}, {fb(1/512)}, v7")
        E(f"v_sub_f32 v58, v48, v{rm}"); E("v_mul_f32 v7, v58, v58")
        for j in range(1, 8):
            E(f"v_sub_f32 v58, v{48+j}, v{rm}"); E("v_fmac_f32 v7, v58, v58")
        wave_sum(7, 56, 5)
        E(f"v_mov_b32 v58, {fb(1e-5)}")
        E(f"v_fmac_f32 v58, {fb(1/512)}, v7")
        E(f"v_rsq_f32 v{rs}, v58")
    stats(60, 61)
    E("s_nop 0")
    for j in range(8):
        E(f"v_sub_f32 v{48+j}, v{48+j}, v60"); E(f"v_mul_f32 v{48+j}, v{48+j}, v61"); round_bf16(48+j, 58)
    E("s_waitcnt vmcnt(16)")
    unpack8(12, 64)
    for j in range(8):
        E(f"v_sub_f32 v{64+j}, v{64+j}, v60"); E(f"v_mul_f32 v{64+j}, v{64+j}, v61"); round_bf16(64+j, 58)
    E("s_cmp_lt_u32 s2, 128"); E("s_cbranch_scc1 K1_NOLN2")
    stats(62, 63)
    E("s_nop 0")
    for j in range(8):
        E(f"v_sub_f32 v{64+j}, v{64+j}, v62"); E(f"v_mul_f32 v{64+j}, v{64+j}, v63"); round_bf16(64+j, 58)
    L("K1_NOLN2")
    for c in range(8): E(f"v_mov_b32 v{72+c}, 0")
    for r in range(8):
        unpack8(16+4*r, 80)
        for c in range(8): E(f"v_fmac_f32 v{72+c}, v{64+r}, v{80+c}")
    E("v_lshlrev_b32 v6, 7, v2"); E("v_lshl_add_u32 v6, v1, 5, v6"); E(f"v_add_u32 v6, {PB}, v6")
    E("ds_write_b128 v6, v[72:75]"); E("ds_write_b128 v6, v[76:79] offset:16")
    E("s_waitcnt lgkmcnt(0)"); E("s_barrier")
    E("v_and_b32 v1, 31, v0"); E("v_lshrrev_b32 v2, 5, v0")
    E("v_lshlrev_b32 v6, 10, v2"); E("v_lshl_add_u32 v6, v1, 2, v6"); E(f"v_add_u32 v6, {PB}, v6")
    for i in range(8): E(f"ds_read_b32 v{16+i}, v6 offset:{i*128}")
    E("s_waitcnt lgkmcnt(0)")
    for i in range(1, 8): E(f"v_add_f32 v16, v16, v{16+i}")
    E("v_lshlrev_b32 v6, 2, v0"); E(f"v_add_u32 v6, {PB}, v6")
    E("ds_write_b32 v6, v16 offset:8192")
    E("s_waitcnt lgkmcnt(0)"); E("s_barrier")
    E("v_cmp_gt_u32 vcc, 32, v199"); E("s_and_saveexec_b64 s[30:31], vcc"); E("s_cbranch_execz K1_DN")
    for i in range(8): E(f"ds_read_b32 v{16+i}, v6 offset:{8192+i*128}")
    E("s_waitcnt lgkmcnt(0)")
    for i in range(1, 8): E(f"v_add_f32 v16, v16, v{16+i}")
    E("s_cmp_lt_u32 s2, 128"); E("s_cbranch_scc0 K1_HOUT")
    srd(32, 12, 8192, WS_Q)
    round_bf16(16, 17); E("v_lshrrev_b32 v16, 16, v16")
    E("v_lshlrev_b32 v6, 1, v0"); E("s_lshl_b32 s26, s2, 6"); E("v_add_u32 v6, s26, v6")
    E("buffer_store_short v16, v6, s[32:35], 0 offen sc1")
    E("s_branch K1_DN")
    L("K1_HOUT")
    srd(32, 10, 3584)
    E("v_lshlrev_b32 v6, 1, v0"); E("v_add_u32 v6, s25, v6")
    E("buffer_load_ushort v17, v6, s[32:35], 0 offen")
    srd(36, 12, 1792*4, WS_H)
    E("s_waitcnt vmcnt(0)")
    E("v_lshlrev_b32 v17, 16, v17"); E("v_add_f32 v16, v16, v17")
    E("v_mul_f32 v17, v16, v16"); E("v_mul_f32 v17, v17, v16")
    E(f"v_mov_b32 v18, {fb(0.044715)}"); E("v_fma_f32 v17, v17, v18, v16")
    E(f"v_mul_f32 v17, {fb(2*0.7978845608028654*LOG2E)}, v17")
    E("v_exp_f32 v17, v17"); E("s_nop 0"); E("v_add_f32 v17, 1.0, v17"); E("v_rcp_f32 v17, v17"); E("s_nop 0")
    E("v_fma_f32 v17, v17, -2.0, 1.0")
    E("v_add_f32 v17, 1.0, v17"); E("v_mul_f32 v16, v16, v17"); E("v_mul_f32 v16, 0.5, v16")
    E("v_lshlrev_b32 v6, 1, v6")
    E("buffer_store_dword v16, v6, s[36:39], 0 offen sc1")
    L("K1_DN")
    E("s_mov_b64 exec, -1"); E("v_mov_b32 v0, v199")
    signal(0)
    L("K1_END")
    wait_for(0, 184)

def vdma(b):
    for half in range(2):
        E(f"s_add_u32 s29, s28, {(b&1)*8192 + half*4096}"); E("s_mov_b32 m0, s29")
        E(f"s_mov_b32 s30, {b*8192 + half*4096}")
        for i in range(4):
            E(f"buffer_load_dwordx4 v{197+(i&1)}, s[44:47], s30 offen offset:{1024*i} nt lds")
def k2_setup():
    E("s_load_dwordx2 s[6:7], s[0:1], 16")
    E("v_lshrrev_b32 v1, 6, v0"); E("s_nop 0"); E("v_readfirstlane_b32 s3, v1")
    E("s_lshr_b32 s48, s2, 5"); E("s_and_b32 s49, s2, 31"); E("s_lshl_b32 s48, s48, 23")
    E("s_lshl_b32 s50, s49, 18"); E("s_lshl_b32 s49, s3, 15"); E("s_add_u32 s50, s50, s49")
    E("s_waitcnt lgkmcnt(0)")
    srd(44, 6, 1<<23, "s48")
    E("v_and_b32 v194, 63, v0"); E("v_lshrrev_b32 v195, 4, v194"); E("v_and_b32 v194, 15, v194")
    E("v_lshlrev_b32 v196, 1, v195"); E("v_xor_b32 v197, v194, v196"); E("v_xor_b32 v198, 8, v197")
    E("v_lshlrev_b32 v196, 8, v195"); E("v_add_u32 v196, s50, v196")
    E("v_lshl_add_u32 v197, v197, 4, v196"); E("v_lshl_add_u32 v198, v198, 4, v196")
    E("s_lshl_b32 s28, s3, 14")
def k2():
    E("s_load_dwordx2 s[4:5], s[0:1], 8"); E("s_load_dwordx2 s[6:7], s[0:1], 16"); E("s_load_dwordx2 s[8:9], s[0:1], 96")
    E("v_lshrrev_b32 v1, 6, v0"); E("s_nop 0"); E("v_readfirstlane_b32 s3, v1")
    E("s_lshr_b32 s10, s2, 5"); E("s_and_b32 s11, s2, 31")
    E("s_lshl_b32 s12, s10, 23")
    E("s_lshl_b32 s13, s11, 18"); E("s_lshl_b32 s14, s3, 15"); E("s_add_u32 s13, s13, s14")
    E("s_waitcnt lgkmcnt(0)")
    srd(16, 4, 1<<23, "s12"); srd(20, 6, 1<<23, "s12"); srd(24, 8, 8192, WS_Q)
    E("v_and_b32 v2, 63, v0"); E("v_lshrrev_b32 v3, 4, v2"); E("v_and_b32 v4, 15, v2")
    E("s_lshl_b32 s15, s10, 10")
    E("v_lshlrev_b32 v5, 8, v4"); E("v_lshl_add_u32 v5, v3, 4, v5"); E("v_add_u32 v5, s15, v5")
    E("v_mov_b32 v6, 0x10000000"); E("v_cmp_gt_u32 vcc, 4, v4"); E("s_nop 1"); E("v_cndmask_b32 v5, v6, v5, vcc")
    for d in range(4): E(f"buffer_load_dwordx4 v[{16+4*d}:{19+4*d}], v5, s[24:27], 0 offen offset:{64*d} sc1")
    E("v_lshlrev_b32 v5, 8, v4"); E("v_lshl_add_u32 v5, v3, 4, v5"); E("v_add_u32 v5, s13, v5")
    for bt in range(8):
        for d in range(4):
            r = 64 + bt*16 + d*4
            E(f"buffer_load_dwordx4 v[{r}:{r+3}], v5, s[16:19], 0 offen offset:{64*d} nt")
        if bt < 7: E("v_add_u32 v5, 0x1000, v5")
    E("s_lshl_b32 s28, s3, 14")
    E("v_lshrrev_b32 v10, 2, v4"); E("v_lshl_add_u32 v10, v3, 2, v10")
    E("v_and_b32 v11, 7, v10"); E("v_lshlrev_b32 v11, 1, v11")
    E("v_bfe_u32 v12, v4, 1, 1"); E("v_and_b32 v13, 1, v4")
    E("v_lshlrev_b32 v14, 8, v10"); E("v_lshl_add_u32 v14, v13, 3, v14"); E("v_add_u32 v14, s28, v14")
    for nb in range(8):
        E(f"v_add_u32 v15, {2*nb}, v12"); E("v_xor_b32 v15, v15, v11"); E(f"v_lshl_add_u32 v{200+nb}, v15, 4, v14")
    for i in range(32): E(f"v_mov_b32 v{224+i}, 0")
    for bt in range(8):
        E(f"s_waitcnt vmcnt({4*(7-bt)})")
        for d in range(4):
            r = 64 + bt*16 + d*4
            c = "0" if d == 0 else f"v[{32+4*bt}:{35+4*bt}]"
            E(f"v_mfma_f32_16x16x32_bf16 v[{32+4*bt}:{35+4*bt}], v[{r}:{r+3}], v[{16+4*d}:{19+4*d}], {c}")
    E("s_nop 7"); E("s_nop 1")
    E("v_max_f32 v5, v32, v33")
    for i in range(2, 32): E(f"v_max_f32 v5, v5, v{32+i}")
    E("v_lshlrev_b32 v6, 2, v2")
    for m in (16, 32):
        E(f"v_xor_b32 v9, {m*4}, v6"); E("ds_bpermute_b32 v10, v9, v5"); E("s_waitcnt lgkmcnt(0)"); E("v_max_f32 v5, v5, v10")
    E("v_lshlrev_b32 v9, 2, v4"); E("s_lshl_b32 s31, s3, 6"); E("v_add_u32 v9, s31, v9")
    E("ds_write_b32 v9, v5 offset:0x20000 - 0x10000")
    out[-1] = "    v_add_u32 v10, 0x20000, v9"
    E("ds_write_b32 v10, v5")
    E("s_waitcnt lgkmcnt(0)"); E("s_barrier")
    E("v_lshlrev_b32 v9, 2, v4"); E("v_add_u32 v9, 0x20000, v9")
    for w in range(8): E(f"ds_read_b32 v{10+w}, v9 offset:{64*w}")
    E("s_waitcnt lgkmcnt(0)")
    E("v_max_f32 v5, v10, v11")
    for w in range(2, 8): E(f"v_max_f32 v5, v5, v{10+w}")
    c = LOG2E / (128 ** 0.5)
    E(f"s_mov_b32 s32, {fb(c)}")
    E("v_mul_f32 v6, s32, v5"); E("v_sub_f32 v6, 0, v6")
    E("v_mov_b32 v1, 0")
    for i in range(32):
        E(f"v_fma_f32 v{32+i}, v{32+i}, s32, v6")
    for i in range(32):
        E(f"v_exp_f32 v{32+i}, v{32+i}")
    E("s_nop 0")
    for i in range(32): E(f"v_add_f32 v1, v1, v{32+i}")
    for i in range(16): E(f"v_cvt_pk_bf16_f32 v{16+i}, v{32+2*i}, v{33+2*i}")
    for b in range(4):
        if b < 2: E(f"s_waitcnt vmcnt({8 if b == 0 else 0})")
        else: E(f"s_waitcnt vmcnt({8 if b == 2 else 0})")
        so = (b & 1) * 8192
        for nb in range(8):
            r = 64 + 4*nb
            E(f"ds_read_b64_tr_b16 v[{r}:{r+1}], v{200+nb} offset:{so}")
            E(f"ds_read_b64_tr_b16 v[{r+2}:{r+3}], v{200+nb} offset:{so+4096}")
        E("s_waitcnt lgkmcnt(0)")
        if b < 2: vdma(b + 2)
        for nb in range(8):
            r = 64 + 4*nb
            E(f"v_mfma_f32_16x16x32_bf16 v[{224+4*nb}:{227+4*nb}], v[{16+4*b}:{19+4*b}], v[{r}:{r+3}], v[{224+4*nb}:{227+4*nb}]")
    E("s_nop 7"); E("s_nop 1")
    E("s_barrier")
    E("s_lshl_b32 s31, s3, 8"); E("v_lshlrev_b32 v9, 2, v2"); E("v_add_u32 v9, s31, v9"); E("v_add_u32 v9, 0x20400, v9")
    E("ds_write_b32 v9, v1")
    E("s_lshl_b32 s31, s3, 11"); E("v_lshlrev_b32 v9, 2, v4"); E("v_add_u32 v9, s31, v9")
    E("v_cmp_gt_u32 vcc, 16, v2"); E("s_and_saveexec_b64 s[34:35], vcc")
    for nb in range(8):
        for i in range(4): E(f"ds_write_b32 v9, v{224+4*nb+i} offset:{i*512+nb*64}")
    E("s_mov_b64 exec, s[34:35]")
    E("s_waitcnt lgkmcnt(0)"); E("s_barrier")
    E("v_lshlrev_b32 v9, 2, v0")
    for w in range(8): E(f"ds_read_b32 v{10+w}, v9 offset:{2048*w}")
    srd(24, 8, 0x80000, WS_PART); srd(36, 8, 0x2000, WS_ML)
    E("s_waitcnt lgkmcnt(0)")
    for w in range(1, 8): E(f"v_add_f32 v10, v10, v{10+w}")
    E("s_lshl_b32 s31, s2, 11"); E("v_add_u32 v9, s31, v9")
    E("buffer_store_dword v10, v9, s[24:27], 0 offen sc1")
    E("v_cmp_gt_u32 vcc, 4, v0"); E("s_and_saveexec_b64 s[34:35], vcc"); E("s_cbranch_execz K2_END")
    E("v_lshlrev_b32 v9, 2, v0"); E("v_add_u32 v9, 0x20400, v9")
    for j in range(32): E(f"ds_read_b32 v{32+j}, v9 offset:{64*j}")
    E("s_waitcnt lgkmcnt(0)")
    for j in range(1, 32): E(f"v_add_f32 v32, v32, v{32+j}")
    E("v_mul_f32 v33, s32, v5")
    E("v_mov_b32 v34, v32"); E("v_mov_b32 v32, v33"); E("v_mov_b32 v33, v34")
    E("s_lshl_b32 s31, s2, 5"); E("v_lshlrev_b32 v9, 3, v0"); E("v_add_u32 v9, s31, v9")
    E("buffer_store_dwordx2 v[32:33], v9, s[36:39], 0 offen sc1")
    L("K2_END")
    E("s_mov_b64 exec, -1")
    signal(1); wait_for(1, 256)
    E("v_and_b32 v0, 255, v199")

def k3():
    E("s_load_dwordx2 s[4:5], s[0:1], 32"); E("s_load_dwordx2 s[6:7], s[0:1], 64"); E("s_load_dwordx2 s[8:9], s[0:1], 96")
    E("s_waitcnt lgkmcnt(0)")
    srd(12, 4, 4096*512*2); srd(16, 6, 1792*512*2); srd(20, 8, 0x200000)
    E("s_lshl_b32 s24, s2, 14"); E("v_lshlrev_b32 v1, 2, v0"); E("v_add_u32 v2, s24, v1")
    for i in range(16): E(f"buffer_load_dword v{16+i}, v2, s[12:15], 0 offen offset:{1024*i}" if i < 4 else f"buffer_load_dword v{16+i}, v3, s[12:15], 0 offen offset:{1024*(i&3)}") if False else None
    for q in range(4):
        E(f"v_add_u32 v3, {4096*q}, v2")
        for i in range(4): E(f"buffer_load_dword v{16+4*q+i}, v3, s[12:15], 0 offen offset:{1024*i}")
    E("s_mul_i32 s25, s2, 7168"); E("v_add_u32 v2, s25, v1")
    for q in range(2):
        E(f"v_add_u32 v3, {4096*q}, v2")
        for i in range(4 if q == 0 else 3): E(f"buffer_load_dword v{32+4*q+i}, v3, s[16:19], 0 offen offset:{1024*i}")
    E("s_lshr_b32 s26, s2, 3"); E("s_lshr_b32 s27, s26, 2"); E("s_and_b32 s28, s26, 3")
    E("s_lshl_b32 s29, s27, 10"); E("s_lshl_b32 s30, s28, 3"); E("s_add_u32 s29, s29, s30"); E(f"s_add_u32 s29, s29, {WS_ML}")
    E("v_mov_b32 v4, s29")
    for s in range(32): E(f"buffer_load_dwordx2 v[{64+2*s}:{65+2*s}], v4, s[20:23], 0 offen offset:{32*s} sc1")
    E("v_lshrrev_b32 v5, 3, v0"); E("v_and_b32 v6, 7, v0")
    E("s_lshl_b32 s30, s27, 16"); E("s_lshl_b32 s31, s28, 9"); E("s_add_u32 s30, s30, s31")
    E("s_and_b32 s31, s2, 7"); E("s_lshl_b32 s31, s31, 6"); E("s_add_u32 s30, s30, s31"); E(f"s_add_u32 s30, s30, {WS_PART}")
    E("v_lshlrev_b32 v7, 11, v5"); E("v_lshl_add_u32 v7, v6, 3, v7"); E("v_add_u32 v7, s30, v7")
    E("buffer_load_dwordx2 v[8:9], v7, s[20:23], 0 offen sc1")
    E("s_mul_i32 s30, s2, 28"); E(f"s_add_u32 s30, s30, {WS_H}"); E("v_mov_b32 v7, s30")
    for i in range(7): E(f"buffer_load_dword v{40+i}, v7, s[20:23], 0 offen offset:{4*i} sc1")
    E("s_waitcnt vmcnt(8)")
    E("v_max_f32 v10, v64, v66")
    for s in range(2, 32): E(f"v_max_f32 v10, v10, v{64+2*s}")
    E("v_mov_b32 v11, 0")
    for s in range(32):
        E(f"v_sub_f32 v{64+2*s}, v{64+2*s}, v10"); E(f"v_exp_f32 v{64+2*s}, v{64+2*s}")
    E("s_nop 0")
    for s in range(32): E(f"v_fmac_f32 v11, v{64+2*s}, v{65+2*s}")
    E("v_rcp_f32 v11, v11")
    E("v_lshlrev_b32 v12, 2, v5")
    E("v_cmp_eq_u32 vcc, 0, v0"); E("s_and_saveexec_b64 s[34:35], vcc")
    E("v_mov_b32 v13, 0")
    for s in range(32): E(f"ds_write_b32 v13, v{64+2*s} offset:{4*s}")
    E("s_mov_b64 exec, s[34:35]")
    E("s_waitcnt lgkmcnt(0)"); E("s_barrier")
    E("ds_read_b32 v13, v12")
    E("s_waitcnt vmcnt(7) lgkmcnt(0)")
    E("v_mul_f32 v13, v13, v11"); E("v_mul_f32 v8, v8, v13"); E("v_mul_f32 v9, v9, v13")
    E("v_lshlrev_b32 v12, 3, v0")
    E("ds_write_b64 v12, v[8:9] offset:256")
    E("s_waitcnt lgkmcnt(0)"); E("s_barrier")
    E("v_and_b32 v12, 15, v0"); E("v_lshlrev_b32 v12, 2, v12")
    for s in range(32): E(f"ds_read_b32 v{64+s}, v12 offset:{256+64*s}")
    E("s_waitcnt lgkmcnt(0)")
    for s in range(1, 32): E(f"v_add_f32 v64, v64, v{64+s}")
    E("s_barrier")
    E("ds_write_b32 v12, v64 offset:4096")
    E("s_waitcnt lgkmcnt(0)"); E("s_barrier")
    E("v_mov_b32 v12, 0")
    for q in range(4): E(f"ds_read_b128 v[{64+4*q}:{67+4*q}], v12 offset:{4096+16*q}")
    E("s_waitcnt vmcnt(0) lgkmcnt(0)")
    E("v_mov_b32 v8, 0"); E("v_mov_b32 v9, 0"); E("v_mov_b32 v10, 0"); E("v_mov_b32 v11, 0")
    for i in range(16):
        E(f"v_lshlrev_b32 v12, 16, v{16+i}"); E(f"v_and_b32 v13, 0xffff0000, v{16+i}")
        E(f"v_fmac_f32 v8, v{64+i}, v12"); E(f"v_fmac_f32 v9, v{64+i}, v13")
    for i in range(7):
        E(f"v_lshlrev_b32 v12, 16, v{32+i}"); E(f"v_and_b32 v13, 0xffff0000, v{32+i}")
        E(f"v_fmac_f32 v10, v{40+i}, v12"); E(f"v_fmac_f32 v11, v{40+i}, v13")
    E("s_lshl_b32 s30, s2, 11"); E("v_lshlrev_b32 v12, 3, v0"); E("v_add_u32 v12, s30, v12")
    E(f"v_add_u32 v13, {WS_P1}, v12"); E("buffer_store_dwordx2 v[8:9], v13, s[20:23], 0 offen sc1")
    E(f"v_add_u32 v13, {WS_P2}, v12"); E("buffer_store_dwordx2 v[10:11], v13, s[20:23], 0 offen sc1")
    E("v_mov_b32 v0, v199")
    signal(2)
    E("s_cmp_ge_u32 s2, 8"); E("s_cbranch_scc1 K4_END")
    wait_for(2, 256)
    E("v_and_b32 v0, 255, v199")

def k4():
    E("s_load_dwordx2 s[4:5], s[0:1], 0"); E("s_load_dwordx2 s[6:7], s[0:1], 72"); E("s_load_dwordx2 s[8:9], s[0:1], 96"); E("s_load_dwordx2 s[10:11], s[0:1], 80")
    E("s_mov_b32 s40, 0x7fff")
    E("s_waitcnt lgkmcnt(0)")
    srd(12, 4, 1024); srd(16, 6, 1024); srd(20, 8, 0x200000); srd(24, 10, 1024)
    E("v_and_b32 v1, 63, v0"); E("v_lshrrev_b32 v2, 6, v0")
    E("s_lshl_b32 s28, s2, 8"); E("v_lshlrev_b32 v3, 2, v1"); E("v_add_u32 v3, s28, v3")
    E("v_lshlrev_b32 v4, 17, v2"); E("v_add_u32 v3, v3, v4")
    for arr, ws in ((0, WS_P1), (1, WS_P2)):
        E(f"v_add_u32 v4, {ws}, v3")
        for half in range(32):
            E(f"buffer_load_dword v{16+64*arr+2*half}, v4, s[20:23], 0 offen sc1")
            E(f"buffer_load_dword v{17+64*arr+2*half}, v4, s[20:23], 0 offen offset:2048 sc1")
            if half < 31: E("v_add_u32 v4, 0x1000, v4")
    E("s_waitcnt vmcnt(0)")
    for arr in range(2):
        for i in range(1, 64): E(f"v_add_f32 v{16+64*arr}, v{16+64*arr}, v{16+64*arr+i}")
    E("v_lshlrev_b32 v4, 2, v0")
    E("ds_write_b32 v4, v16"); E("ds_write_b32 v4, v80 offset:1024")
    E("s_waitcnt lgkmcnt(0)"); E("s_barrier")
    E("v_cmp_gt_u32 vcc, 64, v199"); E("s_and_saveexec_b64 s[30:31], vcc"); E("s_cbranch_execz K4_END")
    for i in range(4):
        E(f"ds_read_b32 v{16+i}, v4 offset:{256*i}"); E(f"ds_read_b32 v{20+i}, v4 offset:{1024+256*i}")
    E("s_lshl_b32 s28, s2, 7"); E("v_lshlrev_b32 v5, 1, v0"); E("v_add_u32 v5, s28, v5")
    E("buffer_load_ushort v24, v5, s[12:15], 0 offen"); E("buffer_load_ushort v25, v5, s[16:19], 0 offen")
    E("s_waitcnt vmcnt(0) lgkmcnt(0)")
    for i in range(1, 4):
        E(f"v_add_f32 v16, v16, v{16+i}"); E(f"v_add_f32 v20, v20, v{20+i}")
    E("v_lshlrev_b32 v24, 16, v24"); E("v_lshlrev_b32 v25, 16, v25")
    E("v_add_f32 v20, v20, v25")
    E(f"v_mul_f32 v21, {fb(-LOG2E)}, v20"); E("v_exp_f32 v21, v21"); E("s_nop 0"); E("v_add_f32 v21, 1.0, v21"); E("v_rcp_f32 v21, v21"); E("s_nop 0")
    E("v_mul_f32 v20, v20, v21")
    E("v_fma_f32 v16, v16, v20, v24")
    round_bf16(16, 17); E("v_lshrrev_b32 v16, 16, v16")
    E("buffer_store_short v16, v5, s[24:27], 0 offen")
    L("K4_END")
    E("s_endpgm")

def desc(k, vg, sg=102):
    out.append(f".amdhsa_kernel {k}")
    out.append(f"  .amdhsa_next_free_vgpr {vg}"); out.append(f"  .amdhsa_next_free_sgpr {sg}")
    out.append(f"  .amdhsa_accum_offset {(vg+3)//4*4}")
    out.append("  .amdhsa_group_segment_fixed_size 0"); out.append("  .amdhsa_kernarg_size 104")
    out.append("  .amdhsa_user_sgpr_count 2"); out.append("  .amdhsa_user_sgpr_kernarg_segment_ptr 1")
    out.append("  .amdhsa_system_sgpr_workgroup_id_x 1"); out.append(".end_amdhsa_kernel")

hdr = open("cdna_kernels/%s.s.ref" % NAME).read().split("; @launch")[0]
out.append(hdr.rstrip("\n"))
out.append("; @launch grid=(256,1,1) block=(512,1,1) lds=147456")
out.append('.amdgcn_target "amdgcn-amd-amdhsa--gfx950"'); out.append(".text")
k1(); k2(); k3(); k4()
out.append('.section .rodata,"a"'); out.append(".p2align 6")
desc(NAME+"_kernel", 256)
open("cdna_kernels/%s.s" % NAME, "w").write("\n".join(out) + "\n")
```
